```python
import torch

def _softmax(x, axis=-1):
    return torch.softmax(x, dim=axis)
def _gelu(x):
    return torch.nn.functional.gelu(x, approximate="tanh")
def _silu(x):
    return torch.nn.functional.silu(x)
def _sigmoid(x):
    return torch.sigmoid(x)
def _layernorm(x, axis=-1, eps=1e-5):
    m = x.mean(dim=axis, keepdim=True)
    v = x.var(dim=axis, keepdim=True, unbiased=False)
    return (x - m) / torch.sqrt(v + eps)
def _scatter_add(tgt, idx, src, axis=0):
    return tgt.clone().index_add_(axis, idx, src)
def _segment_sum(src, seg, n):
    out = torch.zeros((n,) + src.shape[1:], dtype=src.dtype)
    return out.index_add_(0, seg, src)
def _pad(x, pw):
    flat = tuple(v for pair in reversed(pw) for v in pair)
    return torch.nn.functional.pad(x, flat)

kernel_name = 'concat_heads__ssm_conv_h3__sliding_local_dilated__prompt'

def setup_inputs():

    _w = (lambda a: (lambda t: t.to(torch.bfloat16) if t.is_floating_point() else t)(torch.as_tensor(a)))
    def _A_setup():
        B, S, D = 1, 2048, 640
        ks = 4
        return {
            "q": _w((lambda *s: torch.randn(*s, dtype=torch.bfloat16) * 0.05)(B, S, D)),
            "k": _w((lambda *s: torch.randn(*s, dtype=torch.bfloat16) * 0.8)(B, S, D)),
            "v": _w((lambda *s: torch.randn(*s, dtype=torch.bfloat16) * 0.8)(B, S, D)),
            "shift_k": _w((lambda *s: torch.randn(*s, dtype=torch.bfloat16) * 0.8)(D, ks) * 0.5),
            "ssm_k": _w((lambda *s: torch.randn(*s, dtype=torch.bfloat16) * 3.2)(D, S) * (1.0 / S ** 0.5)),
            "ssm_D": _w((lambda *s: torch.randn(*s, dtype=torch.bfloat16) * 0.8)(D)),
        }
    _A_in = _A_setup()

    def _B_setup():
        B, S, D = 1, 2048, 640
        return {
            "x": _w((lambda *s: torch.randn(*s, dtype=torch.bfloat16) * 0.2)(B, S, D)),
            "wqkv": _w((lambda *s: torch.randn(*s, dtype=torch.bfloat16) * 0.2)(D, 3 * D)),
            "wo": _w((lambda *s: torch.randn(*s, dtype=torch.bfloat16) * 0.05)(D, D)),
        }
    _B_in = _B_setup()

    return {
        "A_q": _A_in["q"],
        "A_k": _A_in["k"],
        "A_v": _A_in["v"],
        "A_shift_k": _A_in["shift_k"],
        "A_ssm_k": _A_in["ssm_k"],
        "A_ssm_D": _A_in["ssm_D"],
        "B_x": _B_in["x"],
        "B_wqkv": _B_in["wqkv"],
        "B_wo": _B_in["wo"],
    }

def reference(A_q, A_k, A_v, A_shift_k, A_ssm_k, A_ssm_D, B_x, B_wqkv, B_wo):
    def _A_ref(q, k, v, shift_k, ssm_k, ssm_D):
        B, S, D = q.shape
        ks = shift_k.shape[-1]
        k_pad = _pad(k, ((0, 0), (ks - 1, 0), (0, 0)))
        k_shift = torch.zeros_like(k)
        for t in range(ks):
            k_shift = k_shift + k_pad[:, t:t + S, :] * shift_k[:, ks - 1 - t][None, None, :]
        kv = k_shift * v
        L = 2 * S
        kv_pad = _pad(kv, ((0, 0), (0, S), (0, 0)))
        kf_pad = _pad(ssm_k, ((0, 0), (0, S)))
        kv_f = (lambda x, axes=(-2,-1): torch.fft.rfft2(x.float(), dim=axes))(kv_pad[:, None, :, :], axes=(1, 2))
        kf_f = (lambda x, axes=(-2,-1): torch.fft.rfft2(x.float(), dim=axes))(kf_pad[:, None, :], axes=(1, 2))
        kf_f = (lambda x, *d: x.permute(*d))(kf_f, 1, 2, 0)
        y_f = kv_f * kf_f[None, :, :, :]
        y = (lambda x, s, axes=(-2,-1): torch.fft.irfft2(x, s=s, dim=axes).to(torch.bfloat16))(y_f, (1, L), axes=(1, 2))[:, 0, :S, :]
        y = y + kv * ssm_D[None, None, :]
        return q * y

    def _B_ref(x, wqkv, wo):
        B, S, D = x.shape
        H = 32; Dh = D // H
        W, dil = 8, 2
        qkv = (lambda x, *d: x.permute(*d))((x @ wqkv).reshape(B, S, 3, H, Dh), 2, 0, 3, 1, 4)
        q, k, v = qkv[0], qkv[1], qkv[2]
        scale = Dh ** -0.5
        pos = torch.arange(S)
        off = torch.arange(W) * dil
        idx = pos[:, None] - off[None, :]
        mask = idx >= 0
        idx_c = torch.where(mask, idx, 0).reshape(-1)
        kg = k[:, :, idx_c, :].reshape(B, H, S, W, Dh)
        vg = v[:, :, idx_c, :].reshape(B, H, S, W, Dh)
        logits = torch.einsum("bhsd,bhswd->bhsw", q, kg) * scale
        logits = torch.where(mask[None, None, :, :], logits, -1e9)
        attn = _softmax(logits, axis=-1)
        o = torch.einsum("bhsw,bhswd->bhsd", attn, vg)
        return (lambda x, *d: x.permute(*d))(o, 0, 2, 1, 3).reshape(B, S, D) @ wo

    a = _A_ref(A_q, A_k, A_v, A_shift_k, A_ssm_k, A_ssm_D)
    b = _B_ref(B_x, B_wqkv, B_wo)
    return torch.concatenate([a, b], axis=-1)
```

```python
class Asm:
    def __init__(self):
        self.lines = []
    def __call__(self, s=''):
        for ln in s.split('\n'):
            ln = ln.rstrip()
            if ln.strip():
                self.lines.append(ln if ln.rstrip().endswith(':') or ln.startswith('.') or ln.startswith(';') else '  ' + ln.strip())
    def uniq(self, p):
        self.n = getattr(self, 'n', 0) + 1
        return f"{p}{self.n}"
    def label(self, name):
        self.lines.append(name + ':')
    def text(self):
        return '\n'.join(self.lines) + '\n'

def kernel_header(name):
    return f""".globl {name}
.p2align 8
.type {name},@function
{name}:"""

def kernel_desc(name, vgpr=256, sgpr=102, accum=None, wgy=False):
    if accum is None:
        accum = (min(vgpr, 256) + 3) // 4 * 4
    s = f""".p2align 6
.amdhsa_kernel {name}
  .amdhsa_next_free_vgpr {vgpr}
  .amdhsa_next_free_sgpr {sgpr}
  .amdhsa_accum_offset {accum}
  .amdhsa_group_segment_fixed_size 0
  .amdhsa_kernarg_size 96
  .amdhsa_user_sgpr_count 2
  .amdhsa_user_sgpr_kernarg_segment_ptr 1
  .amdhsa_system_sgpr_workgroup_id_x 1
"""
    if wgy:
        s += "  .amdhsa_system_sgpr_workgroup_id_y 1\n"
    s += """  .amdhsa_float_denorm_mode_32 3
  .amdhsa_float_denorm_mode_16_64 3
.end_amdhsa_kernel
"""
    return s

def srd(a, d, blo, bhi, nbytes):
    a(f"s_mov_b32 s{d}, s{blo}")
    a(f"s_and_b32 s{d+1}, s{bhi}, 0xffff")
    a(f"s_mov_b32 s{d+2}, {nbytes}")
    a(f"s_mov_b32 s{d+3}, 0x20000")
```

```python
from common import *
KROWS = 136
KOFF = 0
VOFF = KROWS*128
A1_LDS = VOFF + 128*128

def gen_a1(a, P, sTile, sWave, vL, lds_base=0, barrier="s_barrier", sb=40, vb=2, flags=""):
    sK, sV, sO, sSh = sb, sb+4, sb+8, sb+12
    sCg, sT0, sA, sB = sb+16, sb+17, sb+18, sb+19
    sP = sb+20
    v = vb
    vKo, vVo, vA, vKA, vKB, vVA, vOut, vW = v, v+1, v+2, v+3, v+4, v+5, v+6, v+8
    vT = v+14
    KF = v+20
    FF = v+26
    VR = v+38
    VF = v+42
    OUT = v+50
    a(f"s_load_dwordx4 s[{sP}:{sP+3}], s[0:1], {KA_K}")
    a(f"s_load_dwordx2 s[{sP+4}:{sP+5}], s[0:1], {KA_SHIFT}")
    a(f"s_load_dwordx2 s[{sP+6}:{sP+7}], s[0:1], {KA_WS}")
    a(f"s_mul_i32 s{sA}, s{sTile}, 6554")
    a(f"s_lshr_b32 s{sA}, s{sA}, 16")
    a(f"s_mul_i32 s{sB}, s{sA}, 10")
    a(f"s_sub_u32 s{sCg}, s{sTile}, s{sB}")
    a(f"s_lshl_b32 s{sT0}, s{sA}, 7")
    a(f"v_lshrrev_b32 v{vT}, 3, v{vL}")
    a(f"v_and_b32 v{vT+1}, 7, v{vL}")
    a(f"v_and_b32 v{vT+2}, 2, v{vT}")
    a(f"v_xor_b32 v{vT+1}, v{vT+1}, v{vT+2}")
    a(f"v_mul_u32_u24 v{vT+2}, 1280, v{vT}")
    a(f"v_lshl_add_u32 v{vKo}, v{vT+1}, 4, v{vT+2}")
    a(f"v_xor_b32 v{vVo}, 64, v{vKo}")
    a(f"s_lshl_b32 s{sA}, s{sCg}, 7")
    a(f"s_sub_u32 s{sB}, s{sT0}, 8")
    a(f"s_mul_i32 s{sB}, s{sB}, 1280")
    a(f"s_add_u32 s{sB}, s{sB}, s{sA}")
    a("s_waitcnt lgkmcnt(0)")
    srd_off(a, sK, sP, sP+1, 0, SZ_SD)
    srd_off(a, sV, sP+2, sP+3, 0, SZ_SD)
    srd_off(a, sSh, sP+4, sP+5, 0, 640*8)
    srd_off(a, sO, sP+6, sP+7, WS_KVT, SZ_SD)
    for n in range(5):
        if n == 4:
            a(f"s_cmp_eq_u32 s{sWave}, 0")
            a(f"s_cbranch_scc0 {P}_k4")
        a(f"s_lshl_b32 s{sA}, s{sWave}, 0")
        a(f"s_add_u32 s{sA}, s{sWave}, {4*n}")
        a(f"s_mul_i32 s{sP}, s{sA}, {8*1280}")
        a(f"s_add_u32 s{sP}, s{sP}, s{sB}")
        a(f"s_and_b32 s{sP+1}, s{sA}, 1")
        a(f"s_cmp_eq_u32 s{sP+1}, 0")
        a(f"s_cselect_b64 vcc, -1, 0")
        a(f"v_cndmask_b32 v{vT}, v{vVo}, v{vKo}, vcc")
        a(f"v_add_u32 v{vT}, s{sP}, v{vT}")
        a(f"s_lshl_b32 s{sA}, s{sA}, 10")
        a(f"s_add_u32 m0, s{sA}, {lds_base + KOFF}")
        a("s_nop 0")
        a(f"buffer_load_dwordx4 v{vT}, s[{sK}:{sK+3}], 0 offen lds")
    a(f"{P}_k4:")
    a(f"s_add_u32 s{sB}, s{sB}, {8*1280}")
    for n in range(4):
        a(f"s_add_u32 s{sA}, s{sWave}, {4*n}")
        a(f"s_mul_i32 s{sP}, s{sA}, {8*1280}")
        a(f"s_add_u32 s{sP}, s{sP}, s{sB}")
        a(f"s_and_b32 s{sP+1}, s{sA}, 1")
        a(f"s_cmp_eq_u32 s{sP+1}, 0")
        a(f"s_cselect_b64 vcc, -1, 0")
        a(f"v_cndmask_b32 v{vT}, v{vVo}, v{vKo}, vcc")
        a(f"s_lshl_b32 s{sA}, s{sA}, 10")
        a(f"s_add_u32 m0, s{sA}, {lds_base + VOFF}")
        a("s_nop 0")
        a(f"buffer_load_dwordx4 v{vT}, s[{sK if False else sV}:{sV+3}], s{sP} offen lds")
    a(f"v_and_b32 v{vT}, 15, v{vL}")
    a(f"s_lshl_b32 s{sA}, s{sCg}, 6")
    a(f"s_lshl_b32 s{sP}, s{sWave}, 4")
    a(f"s_add_u32 s{sA}, s{sA}, s{sP}")
    a(f"v_add_u32 v{vT}, s{sA}, v{vT}")
    a(f"v_lshlrev_b32 v{vT+1}, 3, v{vT}")
    a(f"buffer_load_dwordx2 v[{v+12}:{v+13}], v{vT+1}, s[{sSh}:{sSh+3}], 0 offen")
    a(f"v_lshrrev_b32 v{vT+2}, 4, v{vL}")
    a(f"v_lshlrev_b32 v{vOut}, 12, v{vT}")
    a(f"v_lshl_add_u32 v{vOut}, v{vT+2}, 4, v{vOut}")
    a(f"s_lshl_b32 s{sA}, s{sT0}, 1")
    a(f"v_add_u32 v{vOut}, s{sA}, v{vOut}")
    a(f"v_bfe_u32 v{vT+3}, v{vL}, 2, 2")
    a(f"v_and_b32 v{vT+4}, 3, v{vL}")
    a(f"v_lshrrev_b32 v{vT+5}, 1, v{vT+3}")
    a(f"v_and_b32 v{vT}, 1, v{vT+2}")
    a(f"v_lshl_or_b32 v{vT+5}, v{vT}, 1, v{vT+5}")
    a(f"v_xor_b32 v{vT+5}, s{sWave}, v{vT+5}")
    a(f"v_lshlrev_b32 v{vT+5}, 5, v{vT+5}")
    a(f"v_lshl_add_u32 v{vT+5}, v{vT+4}, 3, v{vT+5}")
    a(f"v_lshl_add_u32 v{vT}, v{vT+2}, 3, v{vT+3}")
    a(f"v_lshl_add_u32 v{vVA}, v{vT}, 7, v{vT+5}")
    a(f"v_add_u32 v{vKA}, {lds_base + KOFF + 4*128}, v{vVA}")
    a(f"v_xor_b32 v{vKB}, 64, v{vVA}")
    a(f"v_add_u32 v{vKB}, {lds_base + KOFF + 8*128}, v{vKB}")
    a(f"v_add_u32 v{vVA}, {lds_base + VOFF}, v{vVA}")
    a("s_waitcnt vmcnt(0)")
    a(barrier)
    a(f"v_lshlrev_b32 v{vW}, 16, v{v+12}")
    a(f"v_and_b32 v{vW+1}, 0xffff0000, v{v+12}")
    a(f"v_lshlrev_b32 v{vW+2}, 16, v{v+13}")
    a(f"v_and_b32 v{vW+3}, 0xffff0000, v{v+13}")
    for r in range(4):
        ro = 32*r*128
        a(f"ds_read_b64_tr_b16 {vr(KF,2)}, v{vKA} offset:{ro}")
        a(f"ds_read_b64_tr_b16 {vr(KF+2,2)}, v{vKB} offset:{ro}")
        a(f"ds_read_b64_tr_b16 {vr(KF+4,2)}, v{vKB} offset:{ro + 4*128}")
        a(f"ds_read_b64_tr_b16 {vr(VR,2)}, v{vVA} offset:{ro}")
        a(f"ds_read_b64_tr_b16 {vr(VR+2,2)}, v{vVA} offset:{ro + 4*128}")
        a("s_waitcnt lgkmcnt(2)")
        for i in range(6):
            if i: a(f"v_lshlrev_b32 v{FF+2*i}, 16, v{KF+i}")
            a(f"v_and_b32 v{FF+2*i+1}, 0xffff0000, v{KF+i}")
        for t in range(8):
            a(f"v_mul_f32 v{OUT+t}, v{vW+3}, v{FF+1+t}")
        for jj in (2, 1, 0):
            for t in range(8):
                a(f"v_fmac_f32 v{OUT+t}, v{vW+jj}, v{FF+4+t-jj}")
        a("s_waitcnt lgkmcnt(0)")
        for i in range(4):
            a(f"v_lshlrev_b32 v{VF+2*i}, 16, v{VR+i}")
            a(f"v_and_b32 v{VF+2*i+1}, 0xffff0000, v{VR+i}")
        for t in range(8):
            a(f"v_mul_f32 v{OUT+t}, v{OUT+t}, v{VF+t}")
        OP = v+58 + 4*(r & 1)
        for i in range(4):
            a(f"v_cvt_pk_bf16_f32 v{OP+i}, v{OUT+2*i}, v{OUT+2*i+1}")
        a(f"buffer_store_dwordx4 {vr(OP,4)}, v{vOut}, s[{sO}:{sO+3}], 0 offen offset:{64*r} {flags}")
```

```python
from common import *
ZL, QL = 0, 8192
A3_LDS = 16384
def gen_a3(a, P, sTile, sWave, vL, lds_base=0, barrier="s_barrier", sb=40, vb=2, flags_ld=""):
    sZ, sQ, sOut = sb, sb+4, sb+8
    sP = sb+12
    sCg, sT0, sA, sB = sb+20, sb+21, sb+22, sb+23
    v = vb
    vT = v
    ZF = (v+8+3)//4*4
    QF = ZF + 8
    TT = QF + 8
    a(f"s_load_dwordx2 s[{sP}:{sP+1}], s[0:1], {KA_Q}")
    a(f"s_load_dwordx2 s[{sP+2}:{sP+3}], s[0:1], {KA_OUT}")
    a(f"s_load_dwordx2 s[{sP+4}:{sP+5}], s[0:1], {KA_WS}")
    a(f"s_mul_i32 s{sA}, s{sTile}, 6554")
    a(f"s_lshr_b32 s{sA}, s{sA}, 16")
    a(f"s_mul_i32 s{sB}, s{sA}, 10")
    a(f"s_sub_u32 s{sCg}, s{sTile}, s{sB}")
    a(f"s_lshl_b32 s{sT0}, s{sA}, 6")
    a(f"v_lshrrev_b32 v{vT}, 3, v{vL}")
    a(f"v_and_b32 v{vT+1}, 7, v{vL}")
    a(f"s_lshl_b32 s{sA}, s{sWave}, 4")
    a(f"v_add_u32 v{vT+2}, s{sA}, v{vT}")
    a("s_waitcnt lgkmcnt(0)")
    srd_off(a, sQ, sP, sP+1, 0, SZ_SD)
    srd_off(a, sOut, sP+2, sP+3, 0, 2048*2560)
    srd_off(a, sZ, sP+4, sP+5, WS_ZT, SZ_SD)
    for n in range(2):
        a(f"v_add_u32 v{vT+3}, {8*n}, v{vT+2}")
        a(f"v_and_b32 v{vT+4}, 2, v{vT+3}")
        a(f"v_bfe_u32 v{vT+5}, v{vT+3}, 4, 1")
        a(f"v_lshl_or_b32 v{vT+4}, v{vT+5}, 2, v{vT+4}")
        a(f"v_xor_b32 v{vT+4}, v{vT+4}, v{vT+1}")
        a(f"s_lshl_b32 s{sB}, s{sCg}, 6")
        a(f"v_add_u32 v{vT+5}, s{sB}, v{vT+3}")
        a(f"v_lshlrev_b32 v{vT+5}, 12, v{vT+5}")
        a(f"v_lshl_add_u32 v{vT+5}, v{vT+4}, 4, v{vT+5}")
        a(f"s_lshl_b32 s{sB}, s{sT0}, 1")
        a(f"s_lshl_b32 s{sP}, s{sWave}, 11")
        a(f"s_add_u32 m0, s{sP}, {lds_base + ZL + 1024*n}")
        a("s_nop 0")
        a(f"buffer_load_dwordx4 v{vT+5}, s[{sZ}:{sZ+3}], s{sB} offen {flags_ld} lds")
        a(f"v_and_b32 v{vT+4}, 7, v{vT+3}")
        a(f"v_xor_b32 v{vT+4}, v{vT+4}, v{vT+1}")
        a(f"v_add_u32 v{vT+5}, s{sT0}, v{vT+3}")
        a(f"v_mul_u32_u24 v{vT+5}, 1280, v{vT+5}")
        a(f"v_lshl_add_u32 v{vT+5}, v{vT+4}, 4, v{vT+5}")
        a(f"s_lshl_b32 s{sB}, s{sCg}, 7")
        a(f"s_add_u32 m0, s{sP}, {lds_base + QL + 1024*n}")
        a("s_nop 0")
        a(f"buffer_load_dwordx4 v{vT+5}, s[{sQ}:{sQ+3}], s{sB} offen lds")
    a(f"v_bfe_u32 v{vT}, v{vL}, 2, 2")
    a(f"v_and_b32 v{vT+1}, 3, v{vL}")
    a(f"v_lshrrev_b32 v{vT+2}, 4, v{vL}")
    a(f"v_lshrrev_b32 v{vT+3}, 1, v{vT}")
    a(f"v_and_b32 v{vT+4}, 1, v{vT+2}")
    a(f"v_lshl_or_b32 v{vT+3}, v{vT+4}, 1, v{vT+3}")
    a(f"v_xor_b32 v{vT+3}, s{sWave}, v{vT+3}")
    a(f"v_lshlrev_b32 v{vT+3}, 5, v{vT+3}")
    a(f"v_lshl_add_u32 v{vT+3}, v{vT+1}, 3, v{vT+3}")
    a(f"v_lshl_add_u32 v{vT+4}, v{vT+2}, 4, v{vT}")
    a(f"v_lshl_add_u32 v{vT+3}, v{vT+4}, 7, v{vT+3}")
    a(f"v_add_u32 v{vT+3}, {lds_base + ZL}, v{vT+3}")
    a(f"v_and_b32 v{vT}, 15, v{vL}")
    a(f"s_lshl_b32 s{sA}, s{sWave}, 4")
    a(f"v_add_u32 v{vT}, s{sA}, v{vT}")
    a(f"v_and_b32 v{vT+1}, 7, v{vT}")
    a(f"v_lshlrev_b32 v{vT+4}, 1, v{vT+2}")
    a(f"v_xor_b32 v{vT+4}, v{vT+4}, v{vT+1}")
    a(f"v_lshlrev_b32 v{vT+4}, 4, v{vT+4}")
    a(f"v_lshl_add_u32 v{vT+4}, v{vT}, 7, v{vT+4}")
    a(f"v_add_u32 v{vT+4}, {lds_base + QL}, v{vT+4}")
    a(f"v_xor_b32 v{vT+5}, 16, v{vT+4}")
    a("s_waitcnt vmcnt(0)")
    a(barrier)
    for i in range(4):
        a(f"ds_read_b64_tr_b16 {vr(ZF+2*i,2)}, v{vT+3} offset:{4*i*128}")
    a(f"ds_read_b128 {vr(QF,4)}, v{vT+4}")
    a(f"ds_read_b128 {vr(QF+4,4)}, v{vT+5}")
    a("s_waitcnt lgkmcnt(0)")
    for i in range(8):
        a(f"v_lshlrev_b32 v{TT}, 16, v{ZF+i}")
        a(f"v_lshlrev_b32 v{TT+1}, 16, v{QF+i}")
        a(f"v_and_b32 v{TT+2}, 0xffff0000, v{ZF+i}")
        a(f"v_and_b32 v{TT+3}, 0xffff0000, v{QF+i}")
        a(f"v_mul_f32 v{TT}, v{TT}, v{TT+1}")
        a(f"v_mul_f32 v{TT+2}, v{TT+2}, v{TT+3}")
        a(f"v_cvt_pk_bf16_f32 v{QF+i}, v{TT}, v{TT+2}")
    a(f"ds_write_b128 v{vT+4}, {vr(QF,4)}")
    a(f"ds_write_b128 v{vT+5}, {vr(QF+4,4)}")
    a("s_waitcnt lgkmcnt(0)")
    a(f"v_lshrrev_b32 v{vT}, 3, v{vL}")
    a(f"v_and_b32 v{vT+1}, 7, v{vL}")
    a(f"s_lshl_b32 s{sA}, s{sWave}, 4")
    a(f"v_add_u32 v{vT}, s{sA}, v{vT}")
    a(f"v_lshlrev_b32 v{vT+2}, 4, v{vL}")
    a(f"s_lshl_b32 s{sB}, s{sWave}, 11")
    a(f"s_add_u32 s{sB}, s{sB}, {lds_base + QL}")
    a(f"v_add_u32 v{vT+2}, s{sB}, v{vT+2}")
    a(f"ds_read_b128 {vr(ZF,4)}, v{vT+2}")
    a(f"ds_read_b128 {vr(ZF+4,4)}, v{vT+2} offset:1024")
    a(f"v_and_b32 v{vT+3}, 7, v{vT}")
    a(f"v_xor_b32 v{vT+3}, v{vT+3}, v{vT+1}")
    a(f"v_add_u32 v{vT}, s{sT0}, v{vT}")
    a(f"v_mul_u32_u24 v{vT}, 2560, v{vT}")
    a(f"v_lshl_add_u32 v{vT}, v{vT+3}, 4, v{vT}")
    a(f"s_lshl_b32 s{sB}, s{sCg}, 7")
    a("s_waitcnt lgkmcnt(1)")
    a(f"buffer_store_dwordx4 {vr(ZF,4)}, v{vT}, s[{sOut}:{sOut+3}], s{sB} offen")
    a(f"v_add_u32 v{vT}, {8*2560}, v{vT}")
    a("s_waitcnt lgkmcnt(0)")
    a(f"buffer_store_dwordx4 {vr(ZF+4,4)}, v{vT}, s[{sOut}:{sOut+3}], s{sB} offen")
```

```python
import sys
sys.path.insert(0, 'dev')
from asmgen import Asm, kernel_header, kernel_desc, srd

S, D = 2048, 640
KA_Q, KA_K, KA_V, KA_SHIFT, KA_SSMK, KA_SSMD, KA_X, KA_WQKV, KA_WO, KA_OUT, KA_DBG, KA_WS = [8*i for i in range(12)]
WS_O   = 0x000000
WS_KVT = 0x300000
WS_ZT  = 0x600000
SZ_SD = S*D*2

def vr(b, n=1):
    return f"v{b}" if n == 1 else f"v[{b}:{b+n-1}]"
def sr(b, n=1):
    return f"s{b}" if n == 1 else f"s[{b}:{b+n-1}]"

def srd_off(a, d, blo, bhi, off, nbytes):
    if off:
        a(f"s_add_u32 s{d}, s{blo}, {hex(off)}")
        a(f"s_addc_u32 s{d+1}, s{bhi}, 0")
        a(f"s_and_b32 s{d+1}, s{d+1}, 0xffff")
    else:
        a(f"s_mov_b32 s{d}, s{blo}")
        a(f"s_and_b32 s{d+1}, s{bhi}, 0xffff")
    a(f"s_mov_b32 s{d+2}, {nbytes}")
    a(f"s_mov_b32 s{d+3}, 0x20000")

def code_prefetch(a, start_label, end_label, vtmp, vdst, stmp):
    pass
```

```python
from common import *
KPAD, XPAD = 32, 224
KL = 0
XL = 4160
CONV_LDS = 8480

def gen_conv(a, P, sCh, vL, sLds, sb=40, vb=2, flags_ld="", flags_st=""):
    sKs, sX, sZ = sb, sb+4, sb+8
    sP = sb+12
    sD, sA = sb+20, sb+21
    v = vb
    vOff, vKa, vXa, vKv, vZo = v, v+1, v+2, v+3, v+4
    vT = v+5
    TMP = v+8
    ZERO = v+16
    base = (v + 18 + 3)//4*4
    KF = base
    XF = KF + 64
    ACC = XF + 12
    last = ACC + 128
    a(f"s_load_dwordx4 s[{sP}:{sP+3}], s[0:1], {KA_SSMK}")
    a(f"s_load_dwordx2 s[{sP+4}:{sP+5}], s[0:1], {KA_WS}")
    a(f"v_lshlrev_b32 v{vOff}, 4, v{vL}")
    a(f"s_lshl_b32 s{sA}, s{sCh}, 12")
    a("s_waitcnt lgkmcnt(0)")
    srd_off(a, sKs, sP, sP+1, 0, SZ_SD)
    srd_off(a, sX, sP+4, sP+5, WS_KVT, SZ_SD)
    srd_off(a, sZ, sP+4, sP+5, WS_ZT, SZ_SD)
    a(f"s_lshr_b32 s{sD}, s{sCh}, 1")
    a(f"s_lshl_b32 s{sD}, s{sD}, 2")
    a(f"s_load_dword s{sD}, s[{sP+2}:{sP+3}], s{sD}")
    for i in range(4):
        a(f"s_add_u32 m0, s{sLds}, {KL + KPAD + 1024*i}")
        a(f"s_add_u32 s{sP+6}, s{sA}, {1024*i}")
        a(f"buffer_load_dwordx4 v{vOff}, s[{sKs}:{sKs+3}], s{sP+6} offen lds")
    for i in range(4):
        a(f"s_add_u32 m0, s{sLds}, {XL + XPAD + 1024*i}")
        a(f"s_add_u32 s{sP+6}, s{sA}, {1024*i}")
        a(f"buffer_load_dwordx4 v{vOff}, s[{sX}:{sX+3}], s{sP+6} offen {flags_ld} lds")
    for i in range(4):
        a(f"v_mov_b32 v{TMP+i}, 0")
    a(f"v_mov_b32 v{ZERO}, 0")
    a(f"v_add_u32 v{vT}, s{sLds}, v{vOff}")
    a(f"s_mov_b64 exec, 0x3fff")
    a(f"ds_write_b128 v{vT}, {vr(TMP,4)} offset:{XL}")
    a(f"s_mov_b64 exec, 3")
    a(f"ds_write_b128 v{vT}, {vr(TMP,4)} offset:{KL}")
    a(f"s_mov_b64 exec, -1")
    a(f"v_bfe_u32 v{vT}, v{vL}, 2, 2")
    a(f"v_and_b32 v{vT+1}, 3, v{vL}")
    a(f"v_lshrrev_b32 v{vT+2}, 4, v{vL}")
    a(f"v_sub_u32 v{vKa}, v{vT+1}, v{vT}")
    a(f"v_lshlrev_b32 v{vKa}, 3, v{vKa}")
    a(f"v_lshlrev_b32 v{vZo}, 6, v{vT+2}")
    a(f"v_sub_u32 v{vKa}, v{vKa}, v{vZo}")
    a(f"s_add_u32 s{sP+6}, s{sLds}, {KL + 224}")
    a(f"v_add_u32 v{vKa}, s{sP+6}, v{vKa}")
    a(f"v_lshlrev_b32 v{vXa}, 5, v{vT+1}")
    a(f"v_lshl_add_u32 v{vXa}, v{vT}, 3, v{vXa}")
    a(f"v_add_u32 v{vXa}, v{vXa}, v{vZo}")
    a(f"s_add_u32 s{sP+6}, s{sLds}, {XL}")
    a(f"v_add_u32 v{vXa}, s{sP+6}, v{vXa}")
    a(f"v_lshlrev_b32 v{vT}, 1, v{vL}")
    a(f"s_add_u32 s{sP+6}, s{sLds}, {XL + XPAD}")
    a(f"v_add_u32 v{vKv}, s{sP+6}, v{vT}")
    a(f"v_add_u32 v{vZo}, s{sA}, v{vT}")
    a("s_waitcnt vmcnt(0) lgkmcnt(0)")
    a(f"s_and_b32 s{sP+6}, s{sCh}, 1")
    a(f"s_cmp_eq_u32 s{sP+6}, 0")
    a(f"s_cbranch_scc0 {P}_dodd")
    a(f"s_lshl_b32 s{sD}, s{sD}, 16")
    a(f"{P}_dodd:")
    a(f"s_and_b32 s{sD}, s{sD}, 0xffff0000")
    for al in range(16):
        a(f"ds_read_b64_tr_b16 {vr(KF+4*al,2)}, v{vKa} offset:{32 + 256*al}")
        a(f"ds_read_b64_tr_b16 {vr(KF+4*al+2,2)}, v{vKa} offset:{256*al}")
    def xread(b):
        r = XF + 4*(b % 3)
        a(f"ds_read_b64_tr_b16 {vr(r,2)}, v{vXa} offset:{128*b}")
        a(f"ds_read_b64_tr_b16 {vr(r+2,2)}, v{vXa} offset:{128*b+32}")
    xread(0); xread(1)
    U2, U1, Y, KV = TMP, TMP+2, TMP+4, TMP+5
    a(f"v_mov_b32 v{KV}, 0")
    a(f"v_mov_b32 v{KV+1}, 0")
    dpp = "row_mask:0xf bank_mask:0xf"
    def epilogue(T):
        Z = ACC + 4*T
        p3 = (ACC + 4*(T-1) + 3) if T else ZERO
        u2, u2p = U2 + (T & 1), (U2 + ((T-1) & 1)) if T else ZERO
        u1, u1p = U1 + (T & 1), (U1 + ((T-1) & 1)) if T else ZERO
        kv = KV + (T & 1)
        a(f"ds_read_u16_d16_hi v{kv}, v{vKv} offset:{128*T}")
        a(f"v_add_f32_dpp v{u2}, v{p3}, v{Z+2} wave_ror:1 {dpp}")
        a(f"v_add_f32_dpp v{u2}, v{Z+3}, v{Z+2} wave_shr:1 {dpp}")
        a("s_nop 0")
        a(f"v_add_f32_dpp v{u1}, v{u2p}, v{Z+1} wave_ror:1 {dpp}")
        a(f"v_add_f32_dpp v{u1}, v{u2}, v{Z+1} wave_shr:1 {dpp}")
        a("s_nop 0")
        a(f"v_add_f32_dpp v{Y}, v{u1p}, v{Z} wave_ror:1 {dpp}")
        a(f"v_add_f32_dpp v{Y}, v{u1}, v{Z} wave_shr:1 {dpp}")
        a("s_waitcnt lgkmcnt(0)")
        a(f"v_fma_f32 v{Y}, v{kv}, s{sD}, v{Y}")
        a(f"v_cvt_pk_bf16_f32 v{Z}, v{Y}, v{Y}")
        a(f"buffer_store_short v{Z}, v{vZo}, s[{sZ}:{sZ+3}], 0 offen offset:{128*T} {flags_st}")
    for b in range(32):
        a("s_waitcnt lgkmcnt(2)" if b < 31 else "s_waitcnt lgkmcnt(0)")
        if b + 2 < 32:
            xread(b + 2)
        xr = XF + 4*(b % 3)
        for al in range((31 - b)//2 + 1):
            T = b + 2*al
            c = "0" if b < 2 else vr(ACC+4*T, 4)
            a(f"v_mfma_f32_16x16x32_bf16 {vr(ACC+4*T,4)}, {vr(xr,4)}, {vr(KF+4*al,4)}, {c}")
        if b >= 1:
            epilogue(b - 1)
    a("s_nop 7")
    epilogue(31)
    return last
```

```python
from common import *

SLOT = 40960
WOFF = 10240
QS, KS, V2, OS = 0, 10752, 24192, 37632
QP = 168
VP = 336

def gen_g1(a, P, barrier="s_barrier"):
    vL = 1
    vW = 2
    vX = 10
    vAx0, vAx1, vAw = 13, 14, 15
    vCx0, vCx1, vCw = 16, 17, 18
    vT = 172
    XF = 20
    WF = 60
    ACC = 92
    sX, sW, sO = 8, 12, 16
    sWave, sSt, sIss, sCmp, sSoW, sSoX, sWl, sXl, sRow0, sHg, sT0, sT1 = 20, 21, 22, 23, 24, 25, 26, 27, 28, 29, 30, 31
    def acc(rt, j): return ACC + 4*(5*j + rt)
    def xf(b, rt): return XF + 20*b + 4*rt
    def wf(b, j): return WF + 16*b + 4*j

    a(f"s_load_dwordx4 s[40:43], s[0:1], {KA_X}")
    a(f"s_load_dwordx2 s[44:45], s[0:1], {KA_WS}")
    a(f"v_and_b32 v{vL}, 63, v0")
    a(f"v_lshrrev_b32 v{vT}, 6, v0")
    a(f"s_and_b32 s{sT0}, s2, 7")
    a(f"s_lshr_b32 s{sT1}, s2, 3")
    a(f"v_readfirstlane_b32 s{sWave}, v{vT}")
    a(f"s_and_b32 s{sRow0}, s{sT0}, 3")
    a(f"s_lshl_b32 s{sRow0}, s{sRow0}, 3")
    a(f"s_and_b32 s{sHg}, s{sT1}, 7")
    a(f"s_add_u32 s{sRow0}, s{sRow0}, s{sHg}")
    a(f"s_lshl_b32 s{sRow0}, s{sRow0}, 6")
    a(f"s_lshr_b32 s{sHg}, s{sT0}, 2")
    a(f"s_lshl_b32 s{sHg}, s{sHg}, 2")
    a(f"s_lshr_b32 s{sT1}, s{sT1}, 3")
    a(f"s_add_u32 s{sHg}, s{sHg}, s{sT1}")
    a(f"s_lshl_b32 s{sT0}, s{sWave}, 6")
    a(f"v_add_u32 v{vT}, s{sT0}, v{vL}")
    a(f"s_mul_i32 s{sT1}, s{sHg}, 160")
    a(f"s_mov_b32 s46, 2185")
    for j in range(8):
        q = vT if j == 0 else vT+1
        if j:
            a(f"v_add_u32 v{vT+1}, {256*j}, v{vT}")
        a(f"v_mul_lo_u32 v{vT+2}, v{q}, s46")
        a(f"v_lshrrev_b32 v{vT+2}, 16, v{vT+2}")
        a(f"v_mul_u32_u24 v{vT+3}, 30, v{vT+2}")
        a(f"v_sub_u32 v{vT+3}, v{q}, v{vT+3}")
        a(f"v_and_b32 v{vT+4}, 0x33, v{vT+2}")
        a(f"v_and_b32 v{vT+5}, 4, v{vT+2}")
        a(f"v_lshl_or_b32 v{vT+4}, v{vT+5}, 1, v{vT+4}")
        a(f"v_and_b32 v{vT+5}, 8, v{vT+2}")
        a(f"v_lshrrev_b32 v{vT+5}, 1, v{vT+5}")
        a(f"v_or_b32 v{vT+4}, v{vT+4}, v{vT+5}")
        a(f"v_mul_u32_u24 v{vT+4}, 3840, v{vT+4}")
        a(f"v_mul_u32_u24 v{vT+5}, 26, v{vT+3}")
        a(f"v_lshrrev_b32 v{vT+5}, 8, v{vT+5}")
        a(f"v_mul_u32_u24 v{vT+6}, 10, v{vT+5}")
        a(f"v_sub_u32 v{vT+6}, v{vT+3}, v{vT+6}")
        a(f"v_mul_u32_u24 v{vT+5}, 1280, v{vT+5}")
        a(f"v_lshl_add_u32 v{vT+5}, v{vT+6}, 4, v{vT+5}")
        a(f"v_add3_u32 v{vW+j}, v{vT+4}, v{vT+5}, s{sT1}")
    a(f"s_lshl_b32 s{sT0}, s{sWave}, 1")
    a(f"s_cmp_eq_u32 s{sWave}, 3")
    a(f"s_addc_u32 s{sT0}, s{sT0}, 0")
    a(f"s_lshl_b32 s{sXl}, s{sT0}, 10")
    a(f"s_lshl_b32 s{sT0}, s{sT0}, 3")
    a(f"v_lshrrev_b32 v{vT}, 3, v{vL}")
    a(f"v_add_u32 v{vT}, s{sT0}, v{vT}")
    a(f"v_and_b32 v{vT+1}, 7, v{vL}")
    a(f"s_sub_u32 s{sT1}, s{sRow0}, 16")
    for n in range(3):
        a(f"v_add_u32 v{vT+2}, {8*n}, v{vT}")
        a(f"v_bfe_u32 v{vT+3}, v{vT+2}, 1, 3")
        a(f"v_xor_b32 v{vT+3}, v{vT+3}, v{vT+1}")
        a(f"v_add_u32 v{vT+2}, s{sT1}, v{vT+2}")
        a(f"v_max_i32 v{vT+2}, 0, v{vT+2}")
        a(f"v_mul_u32_u24 v{vT+2}, 1280, v{vT+2}")
        a(f"v_lshl_add_u32 v{vX+n}, v{vT+3}, 4, v{vT+2}")
    a(f"s_lshl_b32 s{sWl}, s{sWave}, 10")
    a(f"s_add_u32 s{sWl}, s{sWl}, {WOFF}")
    a(f"v_and_b32 v{vT}, 15, v{vL}")
    a(f"v_lshrrev_b32 v{vT+1}, 4, v{vL}")
    a(f"v_lshrrev_b32 v{vT+2}, 1, v{vT}")
    a(f"v_xor_b32 v{vT+3}, v{vT+1}, v{vT+2}")
    a(f"v_lshlrev_b32 v{vT+4}, 7, v{vT}")
    a(f"v_lshl_add_u32 v{vAx0}, v{vT+3}, 4, v{vT+4}")
    a(f"v_xor_b32 v{vAx1}, 64, v{vAx0}")
    a(f"v_lshrrev_b32 v{vT+2}, 1, v{vT+1}")
    a(f"v_lshlrev_b32 v{vT+2}, 4, v{vT+2}")
    a(f"v_and_b32 v{vT+3}, 1, v{vT+1}")
    a(f"v_lshl_add_u32 v{vT+2}, v{vT+3}, 2, v{vT+2}")
    a(f"v_lshrrev_b32 v{vT+3}, 2, v{vT}")
    a(f"v_add_u32 v{vT+2}, v{vT+2}, v{vT+3}")
    a(f"v_mul_u32_u24 v{vT+2}, 480, v{vT+2}")
    a(f"v_and_b32 v{vT+3}, 3, v{vL}")
    a(f"v_lshl_add_u32 v{vT+2}, v{vT+3}, 3, v{vT+2}")
    a(f"s_lshl_b32 s{sT0}, s{sWave}, 7")
    a(f"s_add_u32 s{sT0}, s{sT0}, {WOFF}")
    a(f"v_add_u32 v{vAw}, s{sT0}, v{vT+2}")
    for i in range(80):
        a(f"v_mov_b32 v{ACC+i}, 0")
    a("s_waitcnt lgkmcnt(0)")
    srd_off(a, sX, 40, 41, 0, SZ_SD)
    srd_off(a, sW, 42, 43, 0, 640*3840)
    srd_off(a, sO, 44, 45, WS_O, SZ_SD)

    def issue():
        a(f"s_add_u32 s{sT0}, s{sIss}, s{sWl}")
        for j in range(7):
            a(f"s_add_u32 m0, s{sT0}, {4096*j}")
            a("s_nop 0")
            a(f"buffer_load_dwordx4 v{vW+j}, s[{sW}:{sW+3}], s{sSoW} offen lds")
        a(f"s_add_u32 s{sT1}, s{sIss}, s{sXl}")
        lab = a.uniq(P + "_s7")
        a(f"s_cmp_lt_u32 s{sWave}, 2")
        a(f"s_cbranch_scc0 {lab}x")
        a(f"s_add_u32 m0, s{sT0}, {4096*7}")
        a("s_nop 0")
        a(f"buffer_load_dwordx4 v{vW+7}, s[{sW}:{sW+3}], s{sSoW} offen lds")
        a(f"s_branch {lab}e")
        a(f"{lab}x:")
        a(f"s_add_u32 m0, s{sT1}, 2048")
        a("s_nop 0")
        a(f"buffer_load_dwordx4 v{vX+2}, s[{sX}:{sX+3}], s{sSoX} offen lds")
        a(f"{lab}e:")
        for n in range(2):
            a(f"s_add_u32 m0, s{sT1}, {1024*n}")
            a("s_nop 0")
            a(f"buffer_load_dwordx4 v{vX+n}, s[{sX}:{sX+3}], s{sSoX} offen lds")
        a(f"s_add_u32 s{sSoW}, s{sSoW}, {64*3840}")
        a(f"s_add_u32 s{sSoX}, s{sSoX}, 128")
        a(f"s_add_u32 s{sIss}, s{sIss}, {SLOT}")
        a(f"s_cmp_eq_u32 s{sIss}, {3*SLOT}")
        a(f"s_cselect_b32 s{sIss}, 0, s{sIss}")

    a(f"s_mov_b32 s{sIss}, 0")
    a(f"s_mov_b32 s{sCmp}, 0")
    a(f"s_mov_b32 s{sSoW}, 0")
    a(f"s_mov_b32 s{sSoX}, 0")
    a(f"s_mov_b32 s{sSt}, 0")
    a(f"{P}_pro:")
    issue()
    a(f"s_add_u32 s{sSt}, s{sSt}, 1")
    a(f"s_cmp_lt_u32 s{sSt}, 2")
    a(f"s_cbranch_scc1 {P}_pro")
    a(f"s_mov_b32 s{sSt}, 0")
    a(f"{P}_loop:")
    a(f"s_cmp_eq_u32 s{sSt}, 9")
    a(f"s_cbranch_scc0 {P}_w10")
    a("s_waitcnt vmcnt(0)")
    a(f"{P}_w10:")
    a("s_waitcnt vmcnt(10)")
    a(barrier)
    a(f"v_add_u32 v{vCx0}, s{sCmp}, v{vAx0}")
    a(f"v_add_u32 v{vCx1}, s{sCmp}, v{vAx1}")
    a(f"v_add_u32 v{vCw}, s{sCmp}, v{vAw}")
    def reads(ks):
        vcx = vCx0 if ks == 0 else vCx1
        for rt in range(5):
            a(f"ds_read_b128 {vr(xf(ks, rt), 4)}, v{vcx} offset:{2048*rt}")
        for j in range(4):
            base = ks*32*480 + 32*j
            a(f"ds_read_b64_tr_b16 {vr(wf(ks, j), 2)}, v{vCw} offset:{base}")
            a(f"ds_read_b64_tr_b16 {vr(wf(ks, j)+2, 2)}, v{vCw} offset:{base + 8*480}")
    reads(0)
    a(f"s_cmp_lt_u32 s{sSt}, 8")
    a(f"s_cbranch_scc0 {P}_noiss")
    issue()
    a(f"{P}_noiss:")
    a("s_waitcnt lgkmcnt(0)")
    reads(1)
    def mfmas(ks):
        for j in range(4):
            for rt in range(5):
                a(f"v_mfma_f32_16x16x32_bf16 {vr(acc(rt,j),4)}, {vr(wf(ks,j),4)}, {vr(xf(ks,rt),4)}, {vr(acc(rt,j),4)}")
    mfmas(0)
    a("s_waitcnt lgkmcnt(0)")
    mfmas(1)
    a(f"s_add_u32 s{sCmp}, s{sCmp}, {SLOT}")
    a(f"s_cmp_eq_u32 s{sCmp}, {3*SLOT}")
    a(f"s_cselect_b32 s{sCmp}, 0, s{sCmp}")
    a(f"s_add_u32 s{sSt}, s{sSt}, 1")
    a(f"s_cmp_lt_u32 s{sSt}, 10")
    a(f"s_cbranch_scc1 {P}_loop")
    a(barrier)
    vE0, vE1 = vT+8, vT+9
    a(f"v_and_b32 v{vT}, 15, v{vL}")
    a(f"v_lshrrev_b32 v{vT+1}, 4, v{vL}")
    a(f"v_mul_u32_u24 v{vE0}, {QP}, v{vT}")
    a(f"v_lshl_add_u32 v{vE0}, v{vT+1}, 3, v{vE0}")
    a(f"v_lshrrev_b32 v{vT+2}, 2, v{vT}")
    a(f"v_lshlrev_b32 v{vT+2}, 1, v{vT+2}")
    a(f"v_and_b32 v{vT+3}, 1, v{vT}")
    a(f"v_add_u32 v{vT+2}, v{vT+2}, v{vT+3}")
    a(f"v_mul_u32_u24 v{vE1}, {VP}, v{vT+2}")
    a(f"v_lshl_add_u32 v{vE1}, v{vT+1}, 4, v{vE1}")
    for w in range(4):
        if w < 3:
            a(f"s_cmp_eq_u32 s{sWave}, {w}")
            a(f"s_cbranch_scc1 {P}_ep{w}")
    a(f"s_branch {P}_ep3")
    t0 = vT + 10
    for w in range(4):
        a(f"{P}_ep{w}:")
        for j in range(4):
            ct = 4*w + j
            part, cti = ct // 5, ct % 5
            if part == 3: continue
            for rt in range(5):
                A = acc(rt, j)
                if part == 0:
                    if rt == 0: continue
                    a(f"v_cvt_pk_bf16_f32 v{A}, v{A}, v{A+1}")
                    a(f"v_cvt_pk_bf16_f32 v{A+1}, v{A+2}, v{A+3}")
                    a(f"ds_write_b64 v{vE0}, {vr(A,2)} offset:{QS + (rt-1)*16*QP + cti*32}")
                elif part == 1:
                    a(f"v_cvt_pk_bf16_f32 v{A}, v{A}, v{A+1}")
                    a(f"v_cvt_pk_bf16_f32 v{A+1}, v{A+2}, v{A+3}")
                    a(f"ds_write_b64 v{vE0}, {vr(A,2)} offset:{KS + rt*16*QP + cti*32}")
                else:
                    for r in range(4):
                        a(f"v_mov_b32_dpp v{t0+r}, v{A+r} quad_perm:[2,3,2,3] row_mask:0xf bank_mask:0xf")
                    for r in range(4):
                        a(f"v_cvt_pk_bf16_f32 v{A+r}, v{A+r}, v{t0+r}")
                    a(f"s_mov_b32 exec_lo, 0x33333333")
                    a(f"s_mov_b32 exec_hi, 0x33333333")
                    a(f"ds_write_b128 v{vE1}, {vr(A,4)} offset:{V2 + rt*8*VP + cti*64}")
                    a(f"s_mov_b64 exec, -1")
        if w < 3:
            a(f"s_branch {P}_epd")
    a(f"{P}_epd:")
    a("s_waitcnt lgkmcnt(0)")
    a(barrier)
    Q = 20; K = 30; VV = 110
    LG = 210
    vA = vT = 220
    a(f"s_mul_i32 s{sT0}, s{sWave}, 40")
    a(f"v_mul_u32_u24 v{vA}, {QP}, v{vL}")
    a(f"v_add_u32 v{vA}, s{sT0}, v{vA}")
    for j in range(5):
        a(f"ds_read_b64 {vr(Q+2*j,2)}, v{vA} offset:{QS + 8*j}")
    for w in range(8):
        for j in range(5):
            a(f"ds_read_b64 {vr(K+10*w+2*j,2)}, v{vA} offset:{KS + (16-2*w)*QP + 8*j}")
    a(f"v_lshrrev_b32 v{vA+1}, 2, v{vL}")
    a(f"v_lshlrev_b32 v{vA+1}, 1, v{vA+1}")
    a(f"v_and_b32 v{vA+2}, 1, v{vL}")
    a(f"v_add_u32 v{vA+1}, v{vA+1}, v{vA+2}")
    a(f"v_mul_u32_u24 v{vA+1}, {VP}, v{vA+1}")
    a(f"s_mul_i32 s{sT0}, s{sWave}, 80")
    a(f"v_add_u32 v{vA+1}, s{sT0}, v{vA+1}")
    a("s_waitcnt lgkmcnt(0)")
    for i in range(5):
        for j in range(5):
            a(f"ds_read_b128 {vr(VV+20*i+4*j,4)}, v{vA+1} offset:{V2 + (4-i)*2*VP + 16*j}")
    for w in range(8):
        a(f"v_mov_b32 v{LG+w}, 0")
    for j in range(10):
        for w in range(8):
            a(f"v_dot2c_f32_bf16 v{LG+w}, v{Q+j}, v{K+10*w+j}")
    a(f"s_cmp_eq_u32 s{sRow0}, 0")
    a(f"s_cbranch_scc0 {P}_nomask")
    a(f"v_mov_b32 v{vA+2}, 0xff800000")
    for w in range(1, 8):
        a(f"v_cmp_gt_u32 vcc, {2*w}, v{vL}")
        a("s_nop 1")
        a(f"v_cndmask_b32 v{LG+w}, v{LG+w}, v{vA+2}, vcc")
    a(f"{P}_nomask:")
    a(f"v_max3_f32 v{vA+2}, v{LG}, v{LG+1}, v{LG+2}")
    a(f"v_max3_f32 v{vA+3}, v{LG+3}, v{LG+4}, v{LG+5}")
    a(f"v_max3_f32 v{vA+2}, v{vA+2}, v{LG+6}, v{LG+7}")
    a(f"v_max_f32 v{vA+2}, v{vA+2}, v{vA+3}")
    import struct, math
    cst = struct.unpack('<I', struct.pack('<f', (20 ** -0.5) * math.log2(math.e)))[0]
    a(f"s_mov_b32 s{sT0}, {hex(cst)}")
    a(f"v_mul_f32 v{vA+2}, s{sT0}, v{vA+2}")
    for w in range(8):
        a(f"v_fma_f32 v{LG+w}, v{LG+w}, s{sT0}, -v{vA+2}")
    for w in range(8):
        a(f"v_exp_f32 v{LG+w}, v{LG+w}")
    a(f"v_add_f32 v{vA+2}, v{LG}, v{LG+1}")
    a(f"v_add_f32 v{vA+3}, v{LG+2}, v{LG+3}")
    a(f"v_add_f32 v{vA+4}, v{LG+4}, v{LG+5}")
    a(f"v_add_f32 v{vA+5}, v{LG+6}, v{LG+7}")
    a(f"v_add_f32 v{vA+2}, v{vA+2}, v{vA+3}")
    a(f"v_add_f32 v{vA+4}, v{vA+4}, v{vA+5}")
    a(f"v_add_f32 v{vA+2}, v{vA+2}, v{vA+4}")
    a(f"v_rcp_f32 v{vA+2}, v{vA+2}")
    a(f"v_and_b32 v{vA+3}, 2, v{vL}")
    a(f"v_cmp_ne_u32 vcc, 0, v{vA+3}")
    for w in range(8):
        a(f"v_mul_f32 v{LG+w}, v{LG+w}, v{vA+2}")
    PW = vA + 4
    t = vA + 10
    sel = [(0,1,None,0), (2,3,1,2), (4,5,3,4), (6,7,5,6)]
    for i, (ll, lu, hl, hu) in enumerate(sel):
        a(f"v_cndmask_b32 v{t}, v{LG+ll}, v{LG+lu}, vcc")
        if hl is None:
            a(f"v_cndmask_b32 v{t+1}, 0, v{LG+hu}, vcc")
        else:
            a(f"v_cndmask_b32 v{t+1}, v{LG+hl}, v{LG+hu}, vcc")
        a(f"v_cvt_pk_bf16_f32 v{PW+i}, v{t}, v{t+1}")
    a(f"v_cndmask_b32_e64 v{t+1}, v{LG+7}, 0, vcc")
    a(f"v_cvt_pk_bf16_f32 v{PW+4}, 0, v{t+1}")
    OA = 20
    for d in range(20):
        a(f"v_mov_b32 v{OA+d}, 0")
    a("s_waitcnt lgkmcnt(0)")
    for i in range(5):
        for d in range(20):
            a(f"v_dot2c_f32_bf16 v{OA+d}, v{PW+i}, v{VV+20*i+d}")
    for m in range(10):
        a(f"v_cvt_pk_bf16_f32 v{OA+m}, v{OA+2*m}, v{OA+2*m+1}")
    a(f"v_mul_u32_u24 v{vA}, 160, v{vL}")
    a(f"s_mul_i32 s{sT0}, s{sWave}, 40")
    a(f"v_add_u32 v{vA}, s{sT0}, v{vA}")
    for j in range(5):
        a(f"ds_write_b64 v{vA}, {vr(OA+2*j,2)} offset:{OS + 8*j}")
    a("s_waitcnt lgkmcnt(0)")
    a(barrier)
    a(f"s_mul_i32 s{sT0}, s{sRow0}, 1280")
    a(f"s_mul_i32 s{sT1}, s{sHg}, 160")
    a(f"s_add_u32 s{sT0}, s{sT0}, s{sT1}")
    for n in range(3):
        a(f"v_add_u32 v{vA}, {256*n}, v0")
        a(f"v_lshlrev_b32 v{vA+1}, 4, v{vA}")
        if n == 2:
            a(f"v_cmp_gt_u32 vcc, 640, v{vA}")
            a(f"s_and_saveexec_b64 s[46:47], vcc")
            a(f"s_cbranch_execz {P}_done")
        a(f"ds_read_b128 {vr(24+4*n,4)}, v{vA+1} offset:{OS}")
        a(f"v_mul_u32_u24 v{vA+2}, 6554, v{vA}")
        a(f"v_lshrrev_b32 v{vA+2}, 16, v{vA+2}")
        a(f"v_mul_u32_u24 v{vA+3}, 10, v{vA+2}")
        a(f"v_sub_u32 v{vA+3}, v{vA}, v{vA+3}")
        a(f"v_mul_u32_u24 v{vA+2}, 1280, v{vA+2}")
        a(f"v_lshl_add_u32 v{vA+4+n}, v{vA+3}, 4, v{vA+2}")
        a("s_waitcnt lgkmcnt(0)")
        a(f"buffer_store_dwordx4 {vr(24+4*n,4)}, v{vA+4+n}, s[{sO}:{sO+3}], s{sT0} offen")
    a(f"{P}_done:")
```

```python
from common import *
SLOT2 = 20480
W2OFF = 12288
NSLOT2 = 4
STG_P = 144
G2_LDS = NSLOT2*SLOT2

def gen_g2(a, P, sTile, sWave, vL, lds_base=0, barrier="s_barrier", sb=40, vb=2, flags_ld=""):
    sO, sW, sOut = sb, sb+4, sb+8
    sP = sb+12
    sRow0, sCt, sSt, sIss, sCmp, sSoW, sSoO, sA, sB = [sb+20+i for i in range(9)]
    v = vb
    vO = v
    vW = v+3
    vAo0, vAo1, vAw0, vAw1 = v+5, v+6, v+7, v+8
    vCo0, vCo1, vCw0, vCw1 = v+9, v+10, v+11, v+12
    vT = v+13
    base = (v + 20 + 3)//4*4
    OF = base
    WF = OF + 24
    ACC = WF + 16
    def acc(rt, j): return ACC + 4*(3*j + rt)
    a(f"s_load_dwordx2 s[{sP}:{sP+1}], s[0:1], {KA_WO}")
    a(f"s_load_dwordx2 s[{sP+2}:{sP+3}], s[0:1], {KA_OUT}")
    a(f"s_load_dwordx2 s[{sP+4}:{sP+5}], s[0:1], {KA_WS}")
    a(f"s_mul_i32 s{sA}, s{sTile}, 6554")
    a(f"s_lshr_b32 s{sA}, s{sA}, 16")
    a(f"s_mul_i32 s{sB}, s{sA}, 10")
    a(f"s_sub_u32 s{sCt}, s{sTile}, s{sB}")
    a(f"s_mul_i32 s{sRow0}, s{sA}, 96")
    a(f"s_mul_i32 s{sA}, s{sWave}, 24")
    a(f"v_lshrrev_b32 v{vT}, 3, v{vL}")
    a(f"v_add_u32 v{vT}, s{sA}, v{vT}")
    a(f"v_and_b32 v{vT+1}, 7, v{vL}")
    for n in range(3):
        a(f"v_add_u32 v{vT+2}, {8*n}, v{vT}")
        a(f"v_bfe_u32 v{vT+3}, v{vT+2}, 1, 3")
        a(f"v_xor_b32 v{vT+3}, v{vT+3}, v{vT+1}")
        a(f"v_add_u32 v{vT+2}, s{sRow0}, v{vT+2}")
        a(f"v_mul_u32_u24 v{vT+2}, 1280, v{vT+2}")
        a(f"v_lshl_add_u32 v{vO+n}, v{vT+3}, 4, v{vT+2}")
    a(f"s_lshl_b32 s{sA}, s{sWave}, 4")
    a(f"v_lshrrev_b32 v{vT}, 3, v{vL}")
    a(f"v_add_u32 v{vT}, s{sA}, v{vT}")
    a(f"s_lshl_b32 s{sB}, s{sCt}, 7")
    for n in range(2):
        a(f"v_add_u32 v{vT+2}, {8*n}, v{vT}")
        a(f"v_and_b32 v{vT+3}, 6, v{vT+2}")
        a(f"v_xor_b32 v{vT+3}, v{vT+3}, v{vT+1}")
        a(f"v_and_b32 v{vT+4}, 0x33, v{vT+2}")
        a(f"v_and_b32 v{vT+5}, 4, v{vT+2}")
        a(f"v_lshl_or_b32 v{vT+4}, v{vT+5}, 1, v{vT+4}")
        a(f"v_and_b32 v{vT+5}, 8, v{vT+2}")
        a(f"v_lshrrev_b32 v{vT+5}, 1, v{vT+5}")
        a(f"v_or_b32 v{vT+4}, v{vT+4}, v{vT+5}")
        a(f"v_mul_u32_u24 v{vT+4}, 1280, v{vT+4}")
        a(f"v_lshl_add_u32 v{vT+4}, v{vT+3}, 4, v{vT+4}")
        a(f"v_add_u32 v{vW+n}, s{sB}, v{vT+4}")
    a(f"v_and_b32 v{vT}, 15, v{vL}")
    a(f"v_lshrrev_b32 v{vT+1}, 4, v{vL}")
    a(f"v_lshrrev_b32 v{vT+2}, 1, v{vT}")
    a(f"v_xor_b32 v{vT+3}, v{vT+1}, v{vT+2}")
    a(f"v_lshlrev_b32 v{vT+4}, 7, v{vT}")
    a(f"v_lshl_add_u32 v{vAo0}, v{vT+3}, 4, v{vT+4}")
    a(f"s_lshr_b32 s{sA}, s{sWave}, 1")
    a(f"s_mul_i32 s{sA}, s{sA}, {3*2048}")
    a(f"s_add_u32 s{sA}, s{sA}, {lds_base}")
    a(f"v_add_u32 v{vAo0}, s{sA}, v{vAo0}")
    a(f"v_xor_b32 v{vAo1}, 64, v{vAo0}")
    a(f"v_lshrrev_b32 v{vT+2}, 1, v{vT+1}")
    a(f"v_lshlrev_b32 v{vT+2}, 4, v{vT+2}")
    a(f"v_and_b32 v{vT+3}, 1, v{vT+1}")
    a(f"v_lshl_add_u32 v{vT+2}, v{vT+3}, 2, v{vT+2}")
    a(f"v_lshrrev_b32 v{vT+3}, 2, v{vT}")
    a(f"v_add_u32 v{vT+2}, v{vT+2}, v{vT+3}")
    a(f"v_bfe_u32 v{vT+3}, v{vT+2}, 1, 2")
    a(f"s_and_b32 s{sA}, s{sWave}, 1")
    a(f"s_lshl_b32 s{sA}, s{sA}, 1")
    a(f"v_xor_b32 v{vT+3}, s{sA}, v{vT+3}")
    a(f"v_lshlrev_b32 v{vT+3}, 5, v{vT+3}")
    a(f"v_lshl_add_u32 v{vT+3}, v{vT+2}, 7, v{vT+3}")
    a(f"v_and_b32 v{vT+4}, 3, v{vL}")
    a(f"v_lshl_add_u32 v{vT+3}, v{vT+4}, 3, v{vT+3}")
    a(f"v_add_u32 v{vAw0}, {lds_base + W2OFF}, v{vT+3}")
    a(f"v_xor_b32 v{vAw1}, 32, v{vAw0}")
    for i in range(24):
        a(f"v_mov_b32 v{ACC+i}, 0")
    a("s_waitcnt lgkmcnt(0)")
    srd_off(a, sW, sP, sP+1, 0, 640*1280)
    srd_off(a, sOut, sP+2, sP+3, 0, 2048*2560)
    srd_off(a, sO, sP+4, sP+5, WS_O, SZ_SD)
    a(f"s_mul_i32 s{sP}, s{sWave}, 3072")
    a(f"s_add_u32 s{sP}, s{sP}, {lds_base}")
    a(f"s_lshl_b32 s{sP+1}, s{sWave}, 11")
    a(f"s_add_u32 s{sP+1}, s{sP+1}, {lds_base + W2OFF}")
    def issue():
        a(f"s_add_u32 s{sA}, s{sIss}, s{sP}")
        for n in range(3):
            a(f"s_add_u32 m0, s{sA}, {1024*n}")
            a("s_nop 0")
            a(f"buffer_load_dwordx4 v{vO+n}, s[{sO}:{sO+3}], s{sSoO} offen {flags_ld} lds")
        a(f"s_add_u32 s{sA}, s{sIss}, s{sP+1}")
        for n in range(2):
            a(f"s_add_u32 m0, s{sA}, {1024*n}")
            a("s_nop 0")
            a(f"buffer_load_dwordx4 v{vW+n}, s[{sW}:{sW+3}], s{sSoW} offen lds")
        a(f"s_add_u32 s{sSoW}, s{sSoW}, {64*1280}")
        a(f"s_add_u32 s{sSoO}, s{sSoO}, 128")
        a(f"s_add_u32 s{sIss}, s{sIss}, {SLOT2}")
        a(f"s_cmp_eq_u32 s{sIss}, {NSLOT2*SLOT2}")
        a(f"s_cselect_b32 s{sIss}, 0, s{sIss}")
    for r in (sIss, sCmp, sSoW, sSoO, sSt):
        a(f"s_mov_b32 s{r}, 0")
    a(f"{P}_pro:")
    issue()
    a(f"s_add_u32 s{sSt}, s{sSt}, 1")
    a(f"s_cmp_lt_u32 s{sSt}, 3")
    a(f"s_cbranch_scc1 {P}_pro")
    a(f"s_mov_b32 s{sSt}, 0")
    a(f"{P}_loop:")
    a(f"s_cmp_lt_u32 s{sSt}, 8")
    a(f"s_cbranch_scc1 {P}_w10")
    a(f"s_cmp_eq_u32 s{sSt}, 8")
    a(f"s_cbranch_scc1 {P}_w5")
    a("s_waitcnt vmcnt(0)")
    a(f"{P}_w5:")
    a("s_waitcnt vmcnt(5)")
    a(f"{P}_w10:")
    a("s_waitcnt vmcnt(10)")
    a(barrier)
    a(f"v_add_u32 v{vCo0}, s{sCmp}, v{vAo0}")
    a(f"v_add_u32 v{vCo1}, s{sCmp}, v{vAo1}")
    a(f"v_add_u32 v{vCw0}, s{sCmp}, v{vAw0}")
    a(f"v_add_u32 v{vCw1}, s{sCmp}, v{vAw1}")
    for ks in range(2):
        vco = vCo0 if ks == 0 else vCo1
        for rt in range(3):
            a(f"ds_read_b128 {vr(OF+12*ks+4*rt,4)}, v{vco} offset:{2048*rt}")
        for j in range(2):
            vcw = vCw0 if j == 0 else vCw1
            a(f"ds_read_b64_tr_b16 {vr(WF+8*ks+4*j,2)}, v{vcw} offset:{ks*32*128}")
            a(f"ds_read_b64_tr_b16 {vr(WF+8*ks+4*j+2,2)}, v{vcw} offset:{ks*32*128 + 8*128}")
    a(f"s_cmp_lt_u32 s{sSt}, 7")
    a(f"s_cbranch_scc0 {P}_noiss")
    issue()
    a(f"{P}_noiss:")
    for ks in range(2):
        a("s_waitcnt lgkmcnt(7)" if ks == 0 else "s_waitcnt lgkmcnt(0)")
        for j in range(2):
            for rt in range(3):
                a(f"v_mfma_f32_16x16x32_bf16 {vr(acc(rt,j),4)}, {vr(WF+8*ks+4*j,4)}, {vr(OF+12*ks+4*rt,4)}, {vr(acc(rt,j),4)}")
    a(f"s_add_u32 s{sCmp}, s{sCmp}, {SLOT2}")
    a(f"s_cmp_eq_u32 s{sCmp}, {NSLOT2*SLOT2}")
    a(f"s_cselect_b32 s{sCmp}, 0, s{sCmp}")
    a(f"s_add_u32 s{sSt}, s{sSt}, 1")
    a(f"s_cmp_lt_u32 s{sSt}, 10")
    a(f"s_cbranch_scc1 {P}_loop")
    a(barrier)
    a(f"v_and_b32 v{vT}, 15, v{vL}")
    a(f"v_lshrrev_b32 v{vT+1}, 4, v{vL}")
    a(f"v_mul_u32_u24 v{vT+2}, {STG_P}, v{vT}")
    a(f"v_lshl_add_u32 v{vT+2}, v{vT+1}, 3, v{vT+2}")
    a(f"s_lshr_b32 s{sA}, s{sWave}, 1")
    a(f"s_mul_i32 s{sA}, s{sA}, {48*STG_P}")
    a(f"s_and_b32 s{sB}, s{sWave}, 1")
    a(f"s_lshl_b32 s{sB}, s{sB}, 6")
    a(f"s_add_u32 s{sA}, s{sA}, s{sB}")
    a(f"s_add_u32 s{sA}, s{sA}, {lds_base}")
    a(f"v_add_u32 v{vT+2}, s{sA}, v{vT+2}")
    for j in range(2):
        for rt in range(3):
            A = acc(rt, j)
            a(f"v_cvt_pk_bf16_f32 v{A}, v{A}, v{A+1}")
            a(f"v_cvt_pk_bf16_f32 v{A+1}, v{A+2}, v{A+3}")
            a(f"ds_write_b64 v{vT+2}, {vr(A,2)} offset:{rt*16*STG_P + 32*j}")
    a("s_waitcnt lgkmcnt(0)")
    a(barrier)
    a(f"v_lshrrev_b32 v{vT}, 3, v{vL}")
    a(f"s_mul_i32 s{sA}, s{sWave}, 24")
    a(f"v_add_u32 v{vT}, s{sA}, v{vT}")
    a(f"v_and_b32 v{vT+1}, 7, v{vL}")
    a(f"v_mul_u32_u24 v{vT+2}, {STG_P}, v{vT}")
    a(f"v_lshl_add_u32 v{vT+2}, v{vT+1}, 4, v{vT+2}")
    if lds_base: a(f"v_add_u32 v{vT+2}, {lds_base}, v{vT+2}")
    a(f"v_add_u32 v{vT}, s{sRow0}, v{vT}")
    a(f"v_mul_u32_u24 v{vT}, 2560, v{vT}")
    a(f"v_lshl_add_u32 v{vT}, v{vT+1}, 4, v{vT}")
    a(f"s_lshl_b32 s{sA}, s{sCt}, 7")
    a(f"s_add_u32 s{sA}, s{sA}, 1280")
    a(f"v_add_u32 v{vT}, s{sA}, v{vT}")
    for n in range(3):
        a(f"ds_read_b128 {vr(OF+4*n,4)}, v{vT+2} offset:{8*n*STG_P}")
    for n in range(3):
        a(f"s_waitcnt lgkmcnt({2-n})")
        if n: a(f"v_add_u32 v{vT}, {8*2560}, v{vT}")
        a(f"buffer_store_dwordx4 {vr(OF+4*n,4)}, v{vT}, s[{sOut}:{sOut+3}], 0 offen")
    return ACC + 24
```

```python
import sys
from common import *
import g1, a1, conv, g2, a3

def wrap(kernels, launches, header=""):
    a = Asm()
    if header: a(header)
    for (n, g, b, lds) in launches:
        a(f"; @launch kernel={n} grid=({g},1,1) block=({b},1,1) lds={lds}")
    a('.amdgcn_target "amdgcn-amd-amdhsa--gfx950"')
    a('.text')
    for (n, fn, vg, sg) in kernels:
        a(kernel_header(n))
        fn(a)
        a("s_endpgm")
    a('.section .rodata,"a"')
    for (n, fn, vg, sg) in kernels:
        a(kernel_desc(n, vgpr=vg, sgpr=sg))
    return a.text()

def pro(a, n, lab):
    a(f"s_cmp_ge_u32 s2, {n}")
    a(f"s_cbranch_scc1 {lab}")
    a("v_and_b32 v1, 63, v0")
    a("v_lshrrev_b32 v2, 6, v0")
    a("s_nop 0")
    a("v_readfirstlane_b32 s20, v2")
    a("s_nop 3")

def k_g1(a):
    a("s_cmp_ge_u32 s2, 256")
    a("s_cbranch_scc1 g1_exit")
    g1.gen_g1(a, "g1")
    a("g1_exit:")
def k_a1(a):
    pro(a, 160, "a1_exit")
    a1.gen_a1(a, "a1", 2, 20, 1)
    a("a1_exit:")
def k_conv(a):
    pro(a, 160, "cv_exit")
    a("s_lshl_b32 s21, s2, 2")
    a("s_add_u32 s21, s21, s20")
    a(f"s_mul_i32 s22, s20, {conv.CONV_LDS}")
    conv.gen_conv(a, "cv", 21, 1, 22)
    a("cv_exit:")
def k_g2(a):
    pro(a, 220, "g2_exit")
    g2.gen_g2(a, "g2", 2, 20, 1)
    a("g2_exit:")
def k_a3(a):
    pro(a, 320, "a3_exit")
    a3.gen_a3(a, "a3", 2, 20, 1)
    a("a3_exit:")

KS = {'g1': ("g1_kernel", k_g1, 256, 64), 'a1': ("a1_kernel", k_a1, 128, 80), 'conv': ("conv_kernel", k_conv, 256, 80),
      'g2': ("g2_kernel", k_g2, 128, 80), 'a3': ("a3_kernel", k_a3, 64, 80)}
LS = {'g1': ("g1_kernel", 256, 256, 122944), 'a1': ("a1_kernel", 160, 256, a1.A1_LDS), 'conv': ("conv_kernel", 160, 256, 4*conv.CONV_LDS),
      'g2': ("g2_kernel", 220, 256, g2.G2_LDS), 'a3': ("a3_kernel", 320, 256, a3.A3_LDS)}
if __name__ == '__main__':
    which = sys.argv[1].split(',')
    hdr = ""
    if len(sys.argv) > 3:
        ref = open('concat_heads__ssm_conv_h3__sliding_local_dilated__prompt.s.ref').read().split('\n')
        hdr = '\n'.join(l for l in ref if l.startswith(';') and '@launch' not in l and 'Override' not in l and 'grid=ceil' not in l)
    txt = wrap([KS[w] for w in which], [LS[w] for w in which], hdr)
    open(sys.argv[2], 'w').write(txt)
```
